```python
import torch

def _softmax(x, axis=-1):
    return torch.softmax(x, dim=axis)
def _gelu(x):
    return torch.nn.functional.gelu(x, approximate="tanh")
def _silu(x):
    return torch.nn.functional.silu(x)
def _sigmoid(x):
    return torch.sigmoid(x)
def _layernorm(x, axis=-1, eps=1e-5):
    m = x.mean(dim=axis, keepdim=True)
    v = x.var(dim=axis, keepdim=True, unbiased=False)
    return (x - m) / torch.sqrt(v + eps)
def _scatter_add(tgt, idx, src, axis=0):
    return tgt.clone().index_add_(axis, idx, src)
def _segment_sum(src, seg, n):
    out = torch.zeros((n,) + src.shape[1:], dtype=src.dtype)
    return out.index_add_(0, seg, src)
def _pad(x, pw):
    flat = tuple(v for pair in reversed(pw) for v in pair)
    return torch.nn.functional.pad(x, flat)

kernel_name = 'gated_mix__mha_block_cached__geglu_ffn__decode'

def setup_inputs():

    _w = (lambda a: (lambda t: t.to(torch.bfloat16) if t.is_floating_point() else t)(torch.as_tensor(a)))
    def _A_setup():
        B, Sq, D = 4, 1, 640
        H, Sk, Dh = 32, 4096, 192
        return {
            "x": _w((lambda *s: torch.randn(*s, dtype=torch.bfloat16) * 0.05)(B, Sq, D)),
            "k_cache": _w((lambda *s: torch.randn(*s, dtype=torch.bfloat16) * 6.4)(B, H, Sk, Dh)),
            "v_cache": _w((lambda *s: torch.randn(*s, dtype=torch.bfloat16) * 0.2)(B, H, Sk, Dh)),
            "wq": _w((lambda *s: torch.randn(*s, dtype=torch.bfloat16) * 6.4)(D, H * Dh) * (D ** -0.5)),
            "wo": _w((lambda *s: torch.randn(*s, dtype=torch.bfloat16) * 0.2)(H * Dh, D) * ((H * Dh) ** -0.5)),
        }
    _A_in = _A_setup()

    def _B_setup():
        B, S, D, F = 4, 1, 640, 1536
        return {
            "x": _w((lambda *s: torch.randn(*s, dtype=torch.bfloat16) * 0.05)(B, S, D)),
            "w_gate": _w((lambda *s: torch.randn(*s, dtype=torch.bfloat16) * 0.05)(D, F)),
            "w_up": _w((lambda *s: torch.randn(*s, dtype=torch.bfloat16) * 0.05)(D, F)),
            "w_down": _w((lambda *s: torch.randn(*s, dtype=torch.bfloat16) * 0.05)(F, D)),
        }
    _B_in = _B_setup()

    return {
        "A_x": _A_in["x"],
        "A_k_cache": _A_in["k_cache"],
        "A_v_cache": _A_in["v_cache"],
        "A_wq": _A_in["wq"],
        "A_wo": _A_in["wo"],
        "B_x": _B_in["x"],
        "B_w_gate": _B_in["w_gate"],
        "B_w_up": _B_in["w_up"],
        "B_w_down": _B_in["w_down"],
        "gate_w": _w((lambda *s: torch.randn(*s, dtype=torch.bfloat16) * 0.05)(640) * 16.0),
    }

def reference(A_x, A_k_cache, A_v_cache, A_wq, A_wo, B_x, B_w_gate, B_w_up, B_w_down, gate_w):
    def _A_ref(x, k_cache, v_cache, wq, wo):
        B, Sq, D = x.shape
        H, Dh = 32, 192
        q = (lambda x, *d: x.permute(*d))((x @ wq).reshape(B, Sq, H, Dh), 0, 2, 1, 3)
        scores = torch.einsum("bhqd,bhkd->bhqk", q, k_cache) * (Dh ** -0.5)
        p = _softmax(scores, axis=-1)
        o = torch.einsum("bhqk,bhkd->bhqd", p, v_cache)
        return (lambda x, *d: x.permute(*d))(o, 0, 2, 1, 3).reshape(B, Sq, H * Dh) @ wo

    def _B_ref(x, w_gate, w_up, w_down):
        return (_gelu(x @ w_gate) * (x @ w_up)) @ w_down

    x = A_x
    g = _sigmoid((x * gate_w).sum(-1, keepdims=True))
    a = _A_ref(x, A_k_cache, A_v_cache, A_wq, A_wo)
    b = _B_ref(x, B_w_gate, B_w_up, B_w_down)
    return g * a + (1 - g) * b
```

```python
import re
TRANS = ("v_exp_f32", "v_log_f32", "v_rcp_f32", "v_rsq_f32", "v_sqrt_f32", "v_sin_f32", "v_cos_f32")
def regs_of(tok):
    tok = tok.strip()
    tok = re.sub(r"^-|^\||\|$", "", tok)
    m = re.fullmatch(r"abs\((.*)\)", tok)
    if m: tok = m.group(1)
    m = re.fullmatch(r"([vsa])(\d+)", tok)
    if m: return [(m.group(1), int(m.group(2)))]
    m = re.fullmatch(r"([vsa])\[(\d+):(\d+)\]", tok)
    if m: return [(m.group(1), i) for i in range(int(m.group(2)), int(m.group(3))+1)]
    if tok == "vcc": return [("s", "vcc")]
    if tok == "m0": return [("s", "m0")]
    if tok == "exec": return [("s", "exec")]
    return []
class Ins:
    def __init__(self, text):
        self.text = text
        t = text.split(";")[0].strip()
        self.label = t.endswith(":")
        self.directive = t.startswith(".")
        self.op = ""; self.w = set(); self.r = set(); self.states = 0
        if not t or self.label or self.directive: return
        parts = t.split(None, 1)
        self.op = op = parts[0]
        rest = parts[1] if len(parts) > 1 else ""
        ops = [x.strip() for x in re.split(r",(?![^\[]*\])", rest)]
        mods = ""
        if ops:
            sp = ops[-1].split(None, 1)
            if sp:
                ops[-1] = sp[0]; mods = sp[1] if len(sp) > 1 else ""
        self.ops = ops; self.mods = mods
        self.states = 1
        if op == "s_nop": self.states = int(ops[0], 0) + 1
        R = [regs_of(o) for o in ops]
        self.valu = op.startswith("v_")
        self.mfma = op.startswith("v_mfma")
        self.dot = op.startswith("v_dot")
        self.trans = any(op.startswith(x) for x in TRANS)
        self.dpp = "_dpp" in op
        self.perml = op.startswith("v_permlane")
        self.vmem = op.startswith(("buffer_", "global_"))
        self.ds = op.startswith("ds_")
        self.salu = op.startswith("s_")
        self.ldsdma = self.vmem and re.search(r"\blds\b", mods) is not None
        self.storedata = set()
        self.ab = set()
        if self.valu:
            if self.perml:
                self.w |= set(R[0]) | set(R[1]); self.r |= set(R[0]) | set(R[1])
            else:
                self.w |= set(R[0])
                k = 1
                if op.startswith(("v_add_co", "v_addc_co", "v_sub_co", "v_subb_co", "v_div_scale", "v_mad_u64")):
                    self.w |= set(R[1]); k = 2
                for x in R[k:]: self.r |= set(x)
                if op.startswith(("v_dot2c", "v_fmac", "v_writelane")) or self.dpp: self.r |= set(R[0])
                if self.dot or self.mfma: self.ab = set(R[1]) | set(R[2])
                if op.startswith("v_cmpx"): self.w.add(("s", "exec"))
        elif self.vmem:
            if "store" in op or "atomic" in op:
                for x in R: self.r |= set(x)
                d = R[0] if op.startswith("buffer_") else R[1]
                if len(d) >= 3: self.storedata = set(d)
            elif self.ldsdma:
                for x in R: self.r |= set(x)
                self.r.add(("s", "m0"))
            else:
                self.w |= set(R[0])
                for x in R[1:]: self.r |= set(x)
        elif self.ds:
            if op.startswith("ds_read") or "_rtn" in op or "permute" in op or "swizzle" in op:
                self.w |= set(R[0])
                for x in R[1:]: self.r |= set(x)
            else:
                for x in R: self.r |= set(x)
        elif self.salu:
            if op.startswith(("s_cmp", "s_cbranch", "s_branch", "s_waitcnt", "s_barrier", "s_nop", "s_bitcmp", "s_setprio", "s_sleep", "s_endpgm")):
                for x in R: self.r |= set(x)
            else:
                if R: self.w |= set(R[0])
                for x in R[1:]: self.r |= set(x)
                if "saveexec" in op: self.w.add(("s", "exec"))
def need(p, c):
    n = 0
    vw = {x for x in p.w if x[0] in "va"}; sw = {x for x in p.w if x[0] == "s"}
    if p.valu and not p.mfma:
        if vw & c.r:
            if c.dpp or c.perml: n = max(n, 2)
            if c.mfma: n = max(n, 2)
            if c.op.startswith(("v_readlane", "v_readfirstlane")): n = max(n, 1)
            if p.trans and c.valu: n = max(n, 1)
        if p.dot and (vw & (c.r | c.w)):
            if c.op != p.op or (vw & c.ab): n = max(n, 3)
        if sw & c.r:
            if c.valu: n = max(n, 4 if c.op.startswith(("v_readlane", "v_writelane")) else 2)
            if c.vmem: n = max(n, 5)
        if ("s", "vcc") in sw and c.op.startswith("v_cndmask") : n = max(n, 2)
        if ("s", "exec") in sw and (c.dpp or c.perml or c.mfma or c.op.startswith(("v_readlane", "v_readfirstlane", "v_writelane"))): n = max(n, 5)
    if p.mfma:
        lat = 12 if "32x32" in p.op else 8
        if c.mfma:
            if vw & c.ab: n = max(n, lat)
            elif (vw & c.r) and not (c.op == p.op and c.ops[3] == p.ops[0]): n = max(n, lat)
        elif vw & (c.r | c.w): n = max(n, lat)
    if p.salu and ("s", "m0") in p.w and (c.ldsdma or c.op.startswith(("v_writelane", "v_readlane")) and ("s", "m0") in c.r): n = max(n, 1)
    if p.storedata and c.valu and (p.storedata & c.w): n = max(n, 2)
    return n
def fix_hazards(lines):
    out = []; hist = []
    added = 0
    for text in lines:
        c = Ins(text)
        if c.op:
            dist = 0; req = 0
            for p in reversed(hist):
                if dist >= 12: break
                req = max(req, need(p, c) - dist)
                dist += p.states
            if req > 0:
                nop = Ins(f"  s_nop {req-1}")
                out.append(nop.text); hist.append(nop); added += 1
            hist.append(c)
            if c.op in ("s_branch", "s_endpgm"): hist = []
        out.append(text)
    return out, added
```

```python
import sys
from asmlib import fix_hazards
NAME = "gated_mix__mha_block_cached__geglu_ffn__decode"
HEADER = open("cdna_kernels/" + NAME + ".s.ref").read().split("; Override launch")[0]

WST = 0; SC = 81920; ACC = SC + 24576; QP = ACC + 12288; QL = QP + 4096; AB = QL + 1536; FIN = AB + 512; CNT = FIN + 256
LDS_BYTES = CNT + 256
W_E = 0; W_QA = 0x1000; W_MM = W_QA + 0x40000; W_OP = W_MM + 0x20000; W_YP = W_OP + 32*4*8*768; W_END = W_YP + 2*128*5120
W_TS = 0x400000
OOB = 0x40000000
SPIN = 200000

def gen(DD=5, NPRE=36, ROT=0, TS=False, pol="nt", RING=12):
    L = []
    def A(s): L.append("  " + s)
    def LB(s): L.append(s + ":")
    def C(s): L.append("  ; " + s)
    def ts(k):
        if TS:
            A("s_memrealtime s[98:99]"); A("s_waitcnt lgkmcnt(0)"); A(f"v_writelane_b32 v255, s98, {k}")
    def ts_dyn(sreg, add):
        if TS:
            A("s_memrealtime s[98:99]"); A(f"s_add_u32 s97, {sreg}, {add}"); A("s_mov_b32 s96, m0"); A("s_mov_b32 m0, s97"); A("s_waitcnt lgkmcnt(0)")
            A(f"v_writelane_b32 v255, s98, m0"); A("s_mov_b32 m0, s96")
    def ts_store():
        if TS:
            A("s_lshl_b32 s96, s2, 3"); A("s_add_u32 s96, s96, s3"); A("s_lshl_b32 s96, s96, 8"); A(f"s_add_u32 s96, s96, {W_TS}")
            A("s_getreg_b32 s97, hwreg(HW_REG_XCC_ID)"); A("v_writelane_b32 v255, s97, 63")
            A("v_lshl_add_u32 v254, v0, 2, s96"); A("global_store_dword v254, v255, s[28:29]")
    def allreduce(op, v, t):
        A(f"{op}_dpp {v}, {v}, {v} quad_perm:[1,0,3,2] row_mask:0xf bank_mask:0xf")
        A(f"{op}_dpp {v}, {v}, {v} quad_perm:[2,3,0,1] row_mask:0xf bank_mask:0xf")
        A(f"{op}_dpp {v}, {v}, {v} row_half_mirror row_mask:0xf bank_mask:0xf")
        A(f"{op}_dpp {v}, {v}, {v} row_mirror row_mask:0xf bank_mask:0xf")
        A(f"v_mov_b32 {t}, {v}"); A(f"v_permlane16_swap_b32 {v}, {t}"); A(f"{op} {v}, {v}, {t}")
        A(f"v_mov_b32 {t}, {v}"); A(f"v_permlane32_swap_b32 {v}, {t}"); A(f"{op} {v}, {v}, {t}")

    LB(f"{NAME}_kernel")
    A("s_cmp_ge_u32 s2, 256")
    A("s_cbranch_scc1 L_end")
    A("s_load_dwordx16 s[4:19], s[0:1], 0")
    A("s_load_dwordx8 s[20:27], s[0:1], 64")
    A("s_load_dwordx2 s[28:29], s[0:1], 96")
    if TS:
        A("s_memrealtime s[94:95]"); A("v_mov_b32 v255, 0")
    A("v_lshrrev_b32 v1, 6, v0")
    A("v_and_b32 v0, 63, v0")
    A("v_readfirstlane_b32 s3, v1")
    A("s_lshr_b32 s30, s2, 3")
    A("s_and_b32 s31, s2, 7")
    C("staging lane map: LDS row r <- global row 8*(r>>2)+(r&3), 16B chunk swizzled by r&6")
    A("v_lshrrev_b32 v3, 3, v0")
    A("v_and_b32 v4, 3, v3")
    A("v_lshrrev_b32 v5, 5, v0")
    A("v_lshl_add_u32 v4, v5, 3, v4")
    A("v_and_b32 v5, 6, v3")
    A("v_and_b32 v6, 7, v0")
    A("v_xor_b32 v5, v5, v6")
    A("v_lshlrev_b32 v5, 4, v5")
    A("s_cmp_ge_u32 s3, 4")
    A("s_cbranch_scc1 L_stream")

    sN, sE1, sPH, sNF, sSTR = "s48", "s49", "s57", "s58", "s59"
    SEL = ["s50", "s51", "s52", "s53"]; CK0, CK1, MSK = "s54", "s55", "s56"
    vN = "v7"
    C("line task parameters")
    A("s_cmp_ge_u32 s31, 3"); A("s_cselect_b32 s60, 1, 0")
    A("s_mul_i32 s61, s60, 3"); A("s_sub_u32 s61, s31, s61")
    A("s_lshl_b32 s61, s61, 7")
    A(f"s_mul_i32 s62, s60, {320*12288}"); A("s_add_u32 s61, s61, s62")
    A("s_mul_i32 s62, s30, 384"); A("s_add_u32 s61, s61, s62")
    A("s_mul_i32 s60, s60, 640")
    A("s_cmp_lt_u32 s30, 24"); A("s_cselect_b32 s63, 20, 0")
    A("s_lshl_b32 s62, s30, 7")
    A("s_cmp_lt_u32 s31, 6")
    A(f"s_cselect_b32 {sNF}, 10, s63")
    A("s_cselect_b32 s61, s61, s62")
    A("s_cselect_b32 s60, s60, 0")
    A(f"s_mov_b32 s63, 3072"); A(f"s_cselect_b32 {sSTR}, 12288, s63")
    A(f"s_mov_b32 s63, {640*1536*2}"); A(f"s_cselect_b32 s34, {640*6144*2}, s63")
    A("s_sub_u32 s34, s34, s61")
    A("s_mov_b32 s35, 0x20000")
    A(f"v_mad_u32_u24 v2, v4, {sSTR}, v5")
    A("v_and_b32 v3, 3, v0"); A("v_mul_u32_u24 v3, 1280, v3"); A("v_lshrrev_b32 v6, 4, v0"); A("v_lshl_add_u32 v3, v6, 4, v3")
    A(f"v_mov_b32 v8, {CNT}"); A("v_mov_b32 v9, 0"); A("ds_write_b32 v8, v9")
    A(f"s_lshl_b32 s64, {sSTR}, 5"); A("s_mul_i32 s64, s64, s3")
    A(f"s_lshl_b32 s65, {sSTR}, 4"); A(f"s_lshl_b32 s66, {sSTR}, 2"); A("s_add_u32 s67, s65, s66")
    A(f"s_lshl_b32 s68, {sSTR}, 7")
    A("s_lshl_b32 s69, s3, 6"); A("s_add_u32 s69, s69, s60")
    A("s_lshl_b32 s70, s3, 12")
    A("s_mov_b32 s42, 5120"); A("s_mov_b32 s43, 0x20000")
    A(f"s_mov_b32 s38, {W_END}"); A("s_mov_b32 s39, 0x20000")
    A("s_waitcnt lgkmcnt(0)")
    A(f"s_load_dword {sE1}, s[28:29], {W_E}")
    A("s_cmp_eq_u32 s31, 6"); A("s_cselect_b32 s32, s16, s18"); A("s_cselect_b32 s33, s17, s19")
    A("s_cmp_lt_u32 s31, 6"); A("s_cselect_b32 s32, s10, s32"); A("s_cselect_b32 s33, s11, s33")
    A("s_add_u32 s32, s32, s61"); A("s_addc_u32 s33, s33, 0")
    A("s_mov_b32 s40, s4"); A("s_mov_b32 s41, s5")
    A("s_mov_b32 s36, s28"); A("s_mov_b32 s37, s29")
    XF = 16
    def issue_frag(i):
        A(f"buffer_load_dwordx4 v[{XF+4*i}:{XF+4*i+3}], v3, s[40:43], s69 offen offset:{256*i}")
        for m, so in enumerate([None, "s65", "s66", "s67"]):
            A(f"s_add_u32 m0, s70, {WST + 16384*i + 1024*m}")
            if so: A(f"s_add_u32 s63, s64, {so}")
            A(f"buffer_load_dwordx4 v2, s[32:35], {'s63' if so else 's64'} offen {pol} lds")
        A("s_add_u32 s64, s64, s68")
    A(f"s_cmp_eq_u32 {sNF}, 0"); A("s_cbranch_scc1 L_hb0")
    issue_frag(0); issue_frag(1)
    A("s_add_u32 s63, s3, 8"); A(f"s_cmp_lt_u32 s63, {sNF}"); A("s_cbranch_scc0 L_hb0")
    issue_frag(2)
    LB("L_hb0")
    A("s_barrier")
    A(f"s_cmp_eq_u32 {sNF}, 20"); A("s_cbranch_scc0 L_h1")
    issue_frag(3); issue_frag(4)
    LB("L_h1")
    C("transpose-read addresses")
    A("v_lshrrev_b32 v12, 2, v0"); A("v_lshlrev_b32 v12, 7, v12"); A("v_and_b32 v13, 3, v0"); A("v_lshl_add_u32 v12, v13, 3, v12")
    A("v_bfe_u32 v13, v0, 3, 2")
    A("v_xor_b32 v14, s3, v13"); A("v_lshl_add_u32 v15, v14, 5, v12")
    A("v_add_u32 v12, s70, v12")
    for u in range(4):
        A(f"v_xor_b32 v14, {u}, v13"); A(f"v_lshl_add_u32 v{8+u}, v14, 5, v12")
    DR = 40
    BR = 64
    for r in range(16): A(f"v_mov_b32 v{DR+r}, 0")
    A("v_lshlrev_b32 v6, 4, v0")
    A("s_mov_b32 s72, 0xffff"); A("s_mov_b32 s73, 0")
    A("s_mov_b32 s74, 0xffff0000"); A("s_mov_b32 s75, 0")
    A("s_mov_b32 s76, 0"); A("s_mov_b32 s77, 0xffff")
    A("s_mov_b32 s78, 0"); A("s_mov_b32 s79, 0xffff0000")
    for k in range(4): A(f"s_mov_b32 {SEL[k]}, {0x07060500 + k:#x}")
    A(f"s_mov_b32 {CK0}, 0x0c0c0400"); A(f"s_mov_b32 {CK1}, 0x04000c0c"); A(f"s_mov_b32 {MSK}, 0xffffff00")
    A("s_lshl_b32 s80, s30, 13"); A(f"s_add_u32 s80, s80, {W_QA}")
    A("s_waitcnt lgkmcnt(0)")
    A(f"s_add_u32 {sE1}, {sE1}, 1")
    A(f"s_mul_i32 {sN}, {sE1}, 0x9e3779b1")
    A(f"v_mov_b32 {vN}, {sN}")
    if TS: A("v_writelane_b32 v255, s94, 0")
    A(f"s_cmp_eq_u32 {sNF}, 0"); A("s_cbranch_scc1 L_qgather")
    A("s_waitcnt vmcnt(0)")
    ts(1)
    for i in range(5):
        if i == 2:
            A("s_add_u32 s63, s3, 8"); A(f"s_cmp_lt_u32 s63, {sNF}"); A("s_cbranch_scc0 L_tdone")
        if i == 3:
            A(f"s_cmp_eq_u32 {sNF}, 20"); A("s_cbranch_scc0 L_tdone")
        if i == 4:
            for u in range(4): A(f"v_add_u32 v{8+u}, 0x10000, v{8+u}")
        base = BR + 16*(i & 1)
        for u in range(4):
            for hh in range(2):
                A(f"ds_read_b64_tr_b16 v[{base+4*u+2*hh}:{base+4*u+2*hh+1}], v{8+u} offset:{WST + (16384*i) % 65536 + 2048*hh}")
        for u in range(4):
            A(f"s_waitcnt lgkmcnt({6-2*u})")
            A(f"v_mfma_f32_16x16x32_bf16 v[{DR+4*u}:{DR+4*u+3}], v[{XF+4*i}:{XF+4*i+3}], v[{base+4*u}:{base+4*u+3}], v[{DR+4*u}:{DR+4*u+3}]")
    LB("L_tdone")
    A("s_nop 7")
    def select_rows(dst, tiles):
        for q in range(4):
            A(f"v_cndmask_b32 v{dst+q}, v{tiles[0]+q}, v{tiles[1]+q}, s[74:75]")
        for q in range(4):
            A(f"v_cndmask_b32 v{dst+q}, v{dst+q}, v{tiles[2]+q}, s[76:77]")
        for q in range(4):
            A(f"v_cndmask_b32 v{dst+q}, v{dst+q}, v{tiles[3]+q}, s[78:79]")
    def tag(r):
        for q in range(4): A(f"v_perm_b32 v{r+q}, v{r+q}, {vN}, {SEL[q]}")
    select_rows(60, [DR, DR+4, DR+8, DR+12])
    A("s_lshl_b32 s63, s3, 10"); A("v_add_u32 v12, s63, v6")
    A(f"ds_write_b128 v12, v[60:63] offset:{QP - 65536}" if False else f"v_add_u32 v12, {QP}, v12")
    A("ds_write_b128 v12, v[60:63]")
    A(f"v_mov_b32 v13, {CNT}"); A("v_mov_b32 v14, 1")
    A("s_mov_b64 exec, 1")
    A("ds_add_rtn_u32 v14, v13, v14")
    A("s_mov_b64 exec, -1")
    A(f"v_add_u32 v12, {QP}, v6")
    A("s_waitcnt lgkmcnt(0)")
    A("v_readfirstlane_b32 s63, v14")
    A("s_cmp_eq_u32 s63, 3"); A("s_cbranch_scc0 L_qgather")
    for w in range(4): A(f"ds_read_b128 v[{BR+4*w}:{BR+4*w+3}], v12 offset:{1024*w}")
    A("s_lshl_b32 s63, s31, 10"); A("s_add_u32 s63, s63, s80")
    A("s_waitcnt lgkmcnt(0)")
    def sum4(dst):
        for q in range(4): A(f"v_add_f32 v{BR+q}, v{BR+q}, v{BR+4+q}")
        for q in range(4): A(f"v_add_f32 v{BR+8+q}, v{BR+8+q}, v{BR+12+q}")
        for q in range(4): A(f"v_add_f32 v{dst+q}, v{BR+q}, v{BR+8+q}")
    sum4(60); tag(60)
    A("buffer_store_dwordx4 v[60:63], v6, s[36:39], s63 offen sc1")
    ts(2)
    G0 = 104
    def poll2(name, voff, so0, so1, off1=0, voff1=None):
        A(f"s_mov_b32 s71, {SPIN}")
        LB(name)
        A(f"buffer_load_dwordx4 v[{G0}:{G0+3}], {voff}, s[36:39], {so0} offen sc1")
        if so1 is not None:
            A(f"buffer_load_dwordx4 v[{G0+4}:{G0+7}], {voff1 or voff}, s[36:39], {so1} offen offset:{off1} sc1")
        A("s_sub_u32 s71, s71, 1")
        A(f"s_cbranch_scc1 {name}_x")
        A("s_waitcnt vmcnt(0)")
        A(f"v_perm_b32 v112, v{G0+1}, v{G0}, {CK0}"); A(f"v_perm_b32 v113, v{G0+3}, v{G0+2}, {CK1}")
        if so1 is not None:
            A(f"v_perm_b32 v114, v{G0+5}, v{G0+4}, {CK0}"); A(f"v_perm_b32 v115, v{G0+7}, v{G0+6}, {CK1}")
        A(f"v_bitop3_b32 v112, v112, v113, {vN} bitop3:0x56")
        if so1 is not None:
            A(f"v_bitop3_b32 v114, v114, v115, {vN} bitop3:0x56")
            A("v_or_b32 v112, v112, v114")
        A("v_cmp_ne_u32 vcc, 0, v112")
        A("s_cmp_lg_u64 vcc, 0")
        A(f"s_cbranch_scc1 {name}")
        LB(name + "_x")
        A("s_waitcnt vmcnt(0)")
        for q in range(8 if so1 is not None else 4): A(f"v_and_b32 v{G0+q}, {MSK}, v{G0+q}")
    LB("L_qgather")
    A("s_cmp_eq_u32 s3, 3"); A("s_cbranch_scc1 L_hb1")
    A("s_lshl_b32 s63, s3, 10"); A("s_add_u32 s63, s63, s80")
    poll2("L_pq", "v6", "s63", "s63", 3072)
    for q in range(4): A(f"v_add_f32 v{G0+q}, v{G0+q}, v{G0+4+q}")
    A(f"v_cvt_pk_bf16_f32 v{G0}, v{G0}, v{G0+1}"); A(f"v_cvt_pk_bf16_f32 v{G0+2}, v{G0+2}, v{G0+3}")
    A("s_lshl_b32 s63, s3, 7"); A(f"s_add_u32 s63, s63, {QL}"); A("v_lshl_add_u32 v12, v0, 1, s63")
    A(f"ds_write_b16 v12, v{G0}"); A(f"ds_write_b16_d16_hi v12, v{G0} offset:384")
    A(f"ds_write_b16 v12, v{G0+2} offset:768"); A(f"ds_write_b16_d16_hi v12, v{G0+2} offset:1152")
    A("s_waitcnt lgkmcnt(0)")
    LB("L_hb1")
    ts(3)
    A("s_barrier")
    vG, vOMG, vM, vSCL = "v16", "v17", "v18", "v19"
    A("s_lshr_b32 s81, s31, 1")
    A("s_lshl_b32 s82, s30, 2"); A("s_add_u32 s82, s82, s3")
    A(f"s_mul_i32 s83, s82, {8*768}"); A(f"s_add_u32 s83, s83, {W_OP}")
    A("s_lshl_b32 s82, s82, 10"); A(f"s_add_u32 s82, s82, {W_MM}")
    C("O gather lane offset v20, A-row write address v21, O publish offsets v22/v23")
    A("v_and_b32 v12, 15, v0"); A("v_min_u32 v12, 11, v12"); A("v_lshrrev_b32 v13, 4, v0")
    A("v_mul_u32_u24 v20, 768, v13"); A("v_lshl_add_u32 v20, v12, 4, v20"); A("s_mul_i32 s63, s81, 192"); A("v_add_u32 v20, s63, v20")
    A("v_lshl_add_u32 v21, v12, 2, v13")
    A("s_lshl_b32 s63, s3, 7"); A(f"s_add_u32 s63, s63, {AB}"); A("v_lshl_add_u32 v21, v21, 1, s63")
    A("s_mul_i32 s63, s3, 3072"); A(f"s_add_u32 s63, s63, {ACC}"); A("v_add_u32 v22, s63, v6")
    A(f"v_mov_b32 v12, {OOB}"); A("v_cmp_gt_u32 vcc, 48, v0"); A("v_cndmask_b32 v23, v12, v6, vcc")
    A(f"s_mov_b32 {sPH}, 0")
    LB("L_hloop")
    A("s_barrier")
    ts_dyn(sPH, 4)
    A("s_add_u32 s63, s3, 4"); A(f"s_cmp_eq_u32 {sPH}, s63"); A("s_cbranch_scc0 L_noopub")
    for w in range(4): A(f"ds_read_b128 v[{BR+4*w}:{BR+4*w+3}], v22 offset:{768*w}")
    A("s_mul_i32 s63, s31, 768"); A("s_add_u32 s63, s63, s83")
    A("s_waitcnt lgkmcnt(0)")
    sum4(60)
    for q in range(4): A(f"v_mul_f32 v{60+q}, {vSCL}, v{60+q}")
    tag(60)
    A("buffer_store_dwordx4 v[60:63], v23, s[36:39], s63 offen sc1")
    LB("L_noopub")
    A(f"s_cmp_eq_u32 {sPH}, 7"); A("s_cbranch_scc0 L_notail1")
    ts(12)
    A("s_barrier")
    ts(13)
    for Ln in range(5):
        for f in range(2):
            for hh in range(2):
                r = BR + 8*Ln + 4*f + 2*hh
                A(f"ds_read_b64_tr_b16 v[{r}:{r+1}], v15 offset:{WST + 8192*Ln + 4096*f + 2048*hh}")
    LB("L_notail1")
    A("s_add_u32 s63, s3, 5"); A("s_min_u32 s63, s63, 7"); A(f"s_cmp_eq_u32 {sPH}, s63"); A("s_cbranch_scc0 L_noogat")
    poll2("L_po", "v20", "s83", "s83", 3072)
    def fold4():
        for q in range(4): A(f"v_add_f32 v{G0+q}, v{G0+q}, v{G0+4+q}")
        A(f"v_permlane32_swap_b32 v{G0}, v{G0+2}"); A(f"v_permlane32_swap_b32 v{G0+1}, v{G0+3}")
        A(f"v_add_f32 v{G0}, v{G0}, v{G0+2}"); A(f"v_add_f32 v{G0+1}, v{G0+1}, v{G0+3}")
        A(f"v_permlane16_swap_b32 v{G0}, v{G0+1}")
        A(f"v_add_f32 v{G0}, v{G0}, v{G0+1}")
    fold4()
    A(f"v_cvt_pk_bf16_f32 v{G0}, v{G0}, v{G0}")
    A(f"ds_write_b16 v21, v{G0}")
    LB("L_noogat")
    A(f"s_cmp_eq_u32 {sPH}, 7"); A("s_cbranch_scc1 L_tail")
    A(f"s_cmp_eq_u32 {sPH}, s3"); A("s_cbranch_scc0 L_nosm")
    A("s_mul_i32 s63, s3, 6144"); A(f"s_add_u32 s63, s63, {SC}"); A("v_mul_u32_u24 v12, 96, v0"); A("v_add_u32 v12, s63, v12")
    for i in range(6): A(f"ds_read_b128 v[{BR+4*i}:{BR+4*i+3}], v12 offset:{16*i}")
    A("s_mov_b32 s63, 0x3d93cd3a")
    A("s_mov_b32 s62, 0x3fb8aa3b")
    A("s_waitcnt lgkmcnt(0)")
    S0 = 40
    for t in range(8): A(f"v_add_f32 v{S0+t}, v{BR+3*t}, v{BR+3*t+1}")
    for t in range(8): A(f"v_add_f32 v{S0+t}, v{S0+t}, v{BR+3*t+2}")
    def round8():
        for t in range(0, 8, 2): A(f"v_cvt_pk_bf16_f32 v{S0+t+1}, v{S0+t}, v{S0+t+1}")
        for t in range(0, 8, 2):
            A(f"v_lshlrev_b32 v{S0+t}, 16, v{S0+t+1}"); A(f"v_and_b32 v{S0+t+1}, 0xffff0000, v{S0+t+1}")
    round8()
    for t in range(8): A(f"v_mul_f32 v{S0+t}, s63, v{S0+t}")
    round8()
    A(f"v_max3_f32 {vM}, v{S0}, v{S0+1}, v{S0+2}"); A(f"v_max3_f32 {vM}, {vM}, v{S0+3}, v{S0+4}")
    A(f"v_max3_f32 {vM}, {vM}, v{S0+5}, v{S0+6}"); A(f"v_max_f32 {vM}, {vM}, v{S0+7}")
    allreduce("v_max_f32", vM, "v13")
    for t in range(8): A(f"v_sub_f32 v{S0+t}, v{S0+t}, {vM}")
    for t in range(8): A(f"v_mul_f32 v{S0+t}, s62, v{S0+t}")
    for t in range(8): A(f"v_exp_f32 v{S0+t}, v{S0+t}")
    for t in range(8):
        for i in range(3): A(f"v_cvt_pk_bf16_f32 v{BR+3*t+i}, v{S0+t}, 0")
    for i in range(6): A(f"ds_write_b128 v12, v[{BR+4*i}:{BR+4*i+3}] offset:{16*i}")
    for t in range(4): A(f"v_add_f32 v{S0+t}, v{S0+t}, v{S0+4+t}")
    A(f"v_add_f32 v{S0}, v{S0}, v{S0+1}"); A(f"v_add_f32 v{S0+2}, v{S0+2}, v{S0+3}"); A(f"v_add_f32 v61, v{S0}, v{S0+2}")
    allreduce("v_add_f32", "v61", "v13")
    A(f"v_mov_b32 v60, {vM}"); A("v_mov_b32 v62, 0"); A("v_mov_b32 v63, 0")
    tag(60)
    A(f"v_mov_b32 v12, {OOB}"); A("v_cmp_eq_u32 vcc, 0, v0"); A("v_cndmask_b32 v12, v12, v0, vcc")
    A("s_lshl_b32 s63, s31, 7"); A("s_add_u32 s63, s63, s82")
    A("buffer_store_dwordx4 v[60:63], v12, s[36:39], s63 offen sc1")
    LB("L_nosm")
    A(f"s_cmp_eq_u32 {sPH}, 0"); A("s_cbranch_scc0 L_nogate")
    A("s_mov_b32 s44, s22"); A("s_mov_b32 s45, s23"); A("s_mov_b32 s46, 1280"); A("s_mov_b32 s47, 0x20000")
    A("v_lshlrev_b32 v12, 2, v0"); A("s_mul_i32 s63, s3, 1280")
    for i in range(5): A(f"buffer_load_dword v{BR+i}, v12, s[40:43], s63 offen offset:{256*i}")
    for i in range(5): A(f"buffer_load_dword v{BR+8+i}, v12, s[44:47], 0 offen offset:{256*i}")
    A(f"v_mov_b32 {vG}, 0")
    A("s_waitcnt vmcnt(0)")
    for i in range(5):
        A(f"v_lshlrev_b32 v40, 16, v{BR+i}"); A(f"v_and_b32 v41, 0xffff0000, v{BR+i}")
        A(f"v_lshlrev_b32 v42, 16, v{BR+8+i}"); A(f"v_and_b32 v43, 0xffff0000, v{BR+8+i}")
        A("v_mul_f32 v40, v40, v42"); A("v_mul_f32 v41, v41, v43")
        A("v_cvt_pk_bf16_f32 v41, v40, v41")
        A("v_lshlrev_b32 v40, 16, v41"); A("v_and_b32 v41, 0xffff0000, v41")
        A(f"v_add_f32 {vG}, {vG}, v40"); A(f"v_add_f32 {vG}, {vG}, v41")
    allreduce("v_add_f32", vG, "v13")
    def rnd(v):
        A(f"v_cvt_pk_bf16_f32 {v}, {v}, {v}"); A(f"v_and_b32 {v}, 0xffff0000, {v}")
    rnd(vG)
    A(f"v_mul_f32 {vG}, 0xbfb8aa3b, {vG}"); A(f"v_exp_f32 {vG}, {vG}"); A(f"v_add_f32 {vG}, 1.0, {vG}"); A(f"v_rcp_f32 {vG}, {vG}")
    rnd(vG)
    A(f"v_sub_f32 {vOMG}, 1.0, {vG}"); rnd(vOMG)
    LB("L_nogate")
    A(f"s_cmp_eq_u32 {sPH}, 1"); A("s_cbranch_scc0 L_noffn")
    A("v_mov_b32 v40, 0")
    A("v_and_b32 v12, 15, v0")
    A("s_cmp_lt_u32 s30, 24"); A("s_cbranch_scc0 L_ffnw")
    A("v_lshlrev_b32 v13, 4, v12"); A("s_lshl_b32 s63, s81, 8"); A("s_add_u32 s63, s63, s80"); A("s_add_u32 s63, s63, 6144")
    poll2("L_pf", "v13", "s63", "s63", 1024)
    for k in range(1, 4):
        A(f"s_cmp_eq_u32 s3, {k}"); A("s_cselect_b64 vcc, -1, 0")
        A(f"v_cndmask_b32 v{G0}, v{G0}, v{G0+k}, vcc"); A(f"v_cndmask_b32 v{G0+4}, v{G0+4}, v{G0+4+k}, vcc")
    rnd(f"v{G0}"); rnd(f"v{G0+4}")
    C("gelu_tanh(x) = x / (1 + exp(-2*sqrt(2/pi)*(x + 0.044715 x^3)))")
    A(f"v_mul_f32 v40, v{G0}, v{G0}"); A("v_mul_f32 v40, 0x3d372713, v40"); A("v_add_f32 v40, 1.0, v40"); A(f"v_mul_f32 v40, v40, v{G0}")
    A("v_mul_f32 v40, 0xc0135761, v40")
    A("v_exp_f32 v40, v40"); A("v_add_f32 v40, 1.0, v40"); A("v_rcp_f32 v40, v40"); A(f"v_mul_f32 v40, v40, v{G0}")
    rnd("v40"); A(f"v_mul_f32 v40, v40, v{G0+4}"); rnd("v40"); A(f"v_mul_f32 v40, v40, {vOMG}")
    A("v_cvt_pk_bf16_f32 v40, v40, v40")
    LB("L_ffnw")
    A("s_lshl_b32 s63, s3, 7"); A(f"s_add_u32 s63, s63, {AB+96}"); A("v_lshl_add_u32 v12, v12, 1, s63")
    A("ds_write_b16 v12, v40")
    LB("L_noffn")
    A("s_add_u32 s63, s3, 3"); A(f"s_cmp_eq_u32 {sPH}, s63"); A("s_cbranch_scc0 L_nomg")
    A("v_and_b32 v12, 7, v0"); A("v_lshlrev_b32 v12, 7, v12")
    poll2("L_pm", "v12", "s82", None)
    A(f"v_mov_b32 v40, v{G0}")
    for d in ["quad_perm:[1,0,3,2]", "quad_perm:[2,3,0,1]", "row_half_mirror"]:
        A(f"v_max_f32_dpp v40, v40, v40 {d} row_mask:0xf bank_mask:0xf")
    A(f"v_sub_f32 v41, v{G0}, v40"); A(f"v_sub_f32 v42, {vM}, v40")
    A("v_mul_f32 v41, 0x3fb8aa3b, v41"); A("v_mul_f32 v42, 0x3fb8aa3b, v42")
    A("v_exp_f32 v41, v41"); A("v_exp_f32 v42, v42")
    A(f"v_mul_f32 v41, v41, v{G0+1}")
    for d in ["quad_perm:[1,0,3,2]", "quad_perm:[2,3,0,1]", "row_half_mirror"]:
        A(f"v_add_f32_dpp v41, v41, v41 {d} row_mask:0xf bank_mask:0xf")
    A("v_rcp_f32 v41, v41"); A(f"v_mul_f32 v42, v42, {vG}"); A(f"v_mul_f32 {vSCL}, v42, v41")
    LB("L_nomg")
    A(f"s_add_u32 {sPH}, {sPH}, 1")
    A("s_waitcnt lgkmcnt(0)")
    A("s_branch L_hloop")
    LB("L_tail")
    A("v_and_b32 v12, 3, v0"); A("v_lshlrev_b32 v12, 7, v12"); A("v_lshrrev_b32 v13, 4, v0"); A("v_lshl_add_u32 v12, v13, 4, v12")
    A(f"v_add_u32 v12, {AB}, v12")
    A("s_waitcnt lgkmcnt(0)")
    ts(14)
    A("s_barrier")
    A("ds_read_b128 v[24:27], v12"); A("ds_read_b128 v[28:31], v12 offset:64")
    C("Y store offsets")
    A("s_and_b32 s62, s31, 1"); A("s_lshl_b32 s62, s62, 7"); A("s_lshl_b32 s63, s30, 2"); A("s_add_u32 s63, s63, s81"); A("s_add_u32 s63, s63, s62")
    A("s_mul_i32 s63, s63, 5120"); A("s_lshl_b32 s62, s3, 8"); A("s_add_u32 s63, s63, s62"); A(f"s_add_u32 s63, s63, {W_YP}")
    A("v_and_b32 v14, 15, v0"); A("v_lshlrev_b32 v14, 4, v14"); A("v_lshl_add_u32 v13, v13, 10, v14")
    A(f"v_mov_b32 v12, {OOB}"); A("v_add_u32 v14, 4096, v14"); A("v_cndmask_b32 v14, v12, v14, s[72:73]")
    A("s_waitcnt lgkmcnt(1)")
    for Ln in range(5):
        A(f"v_mfma_f32_16x16x32_bf16 v[{DR+4*Ln}:{DR+4*Ln+3}], v[24:27], v[{BR+8*Ln}:{BR+8*Ln+3}], 0")
    A("s_waitcnt lgkmcnt(0)")
    for Ln in range(5):
        A(f"v_mfma_f32_16x16x32_bf16 v[{DR+4*Ln}:{DR+4*Ln+3}], v[28:31], v[{BR+8*Ln+4}:{BR+8*Ln+7}], v[{DR+4*Ln}:{DR+4*Ln+3}]")
    select_rows(60, [DR, DR+4, DR+8, DR+12])
    tag(60)
    A("buffer_store_dwordx4 v[60:63], v13, s[36:39], s63 offen sc1")
    tag(DR+16)
    A(f"buffer_store_dwordx4 v[{DR+16}:{DR+19}], v14, s[36:39], s63 offen sc1")
    ts(15)
    A("s_cmp_lt_u32 s2, 160"); A("s_cbranch_scc0 L_hend")
    A("s_cmp_ge_u32 s2, 80"); A(f"s_cselect_b32 s62, {128*5120 - 80*64}, 0"); A("s_lshl_b32 s63, s2, 6"); A("s_add_u32 s63, s63, s62")
    A(f"s_mul_i32 s62, s3, {32*5120}"); A("s_add_u32 s63, s63, s62"); A(f"s_add_u32 s63, s63, {W_YP}"); A(f"s_add_u32 s62, s63, {16*5120}")
    A("v_lshrrev_b32 v12, 2, v0"); A("v_mul_u32_u24 v12, 5120, v12"); A("v_and_b32 v13, 3, v0"); A("v_lshl_add_u32 v12, v13, 4, v12")
    A("v_lshrrev_b32 v14, 4, v0"); A("v_lshl_add_u32 v24, v14, 2, v13"); A(f"v_lshlrev_b32 v24, 2, v24"); A(f"v_add_u32 v24, {FIN}, v24")
    A("s_lshl_b32 s61, s3, 6"); A("v_add_u32 v25, s61, v24")
    A("v_mul_u32_u24 v14, 1280, v14"); A("v_lshl_add_u32 v14, v13, 1, v14"); A("v_and_b32 v13, 13, v0"); A("v_lshl_add_u32 v14, v13, 16, v14")
    A("s_mov_b32 s44, s24"); A("s_mov_b32 s45, s25"); A("s_mov_b32 s46, 5120"); A("s_mov_b32 s47, 0x20000")
    poll2("L_py", "v12", "s63", "s62")
    fold4()
    A(f"v_add_f32_dpp v{G0}, v{G0}, v{G0} row_ror:8 row_mask:0xf bank_mask:0xf")
    A(f"v_add_f32_dpp v{G0}, v{G0}, v{G0} row_ror:4 row_mask:0xf bank_mask:0xf")
    A(f"ds_write_b32 v25, v{G0}")
    A("s_waitcnt lgkmcnt(0)")
    ts(16)
    A("s_barrier")
    A("s_cmp_eq_u32 s3, 0"); A("s_cbranch_scc0 L_hend")
    A("ds_read2_b32 v[40:41], v24 offset0:0 offset1:16"); A("ds_read2_b32 v[42:43], v24 offset0:32 offset1:48")
    A("s_lshl_b32 s63, s2, 3")
    A("s_waitcnt lgkmcnt(0)")
    A("v_add_f32 v40, v40, v41"); A("v_add_f32 v42, v42, v43"); A("v_add_f32 v40, v40, v42")
    A("v_mov_b32_dpp v41, v40 quad_perm:[1,0,3,2] row_mask:0xf bank_mask:0xf")
    A("v_cvt_pk_bf16_f32 v40, v40, v41")
    A("buffer_store_dword v40, v14, s[44:47], s63 offen")
    A("s_cmp_eq_u32 s2, 0"); A("s_cbranch_scc0 L_hend")
    A(f"v_mov_b32 v42, {sE1}"); A("v_lshlrev_b32 v43, 24, v0")
    A(f"buffer_store_dword v42, v43, s[36:39], 0 offen offset:{W_E}")
    LB("L_hend")
    ts(17)
    ts_store()
    A("s_endpgm")

    LB("L_stream")
    A("s_setprio 2")
    TAB = 40
    vA, vB, vWo, vKW, vPR, vT = "v1", "v2", "v3", "v4", "v5", "v6"
    vQA = [7, 8, 9]; vZA = [10, 11, 12]
    va, vb, vm, vph = "v13", "v14", "v15", "v16"
    PP = [18, 20]
    Q = 24
    RB = 36
    PB = RB + 4*RING
    AC = PB
    assert PB + 4*NPRE <= 254 and 48 % RING == 0 and 48 - NPRE <= RING
    A("s_sub_u32 s64, s3, 4")
    A("s_movk_i32 s65, 1280"); A(f"v_mad_u32_u24 {vWo}, v4, s65, v5")
    A("s_lshl_b32 s65, s64, 10"); A(f"v_lshl_add_u32 {vA}, v0, 4, s65"); A(f"v_add_u32 {vB}, 0x8000, {vA}")
    A(f"s_mul_i32 s66, s30, 1572864"); A("s_mul_i32 s65, s31, 196608"); A("s_add_u32 s66, s66, s65")
    A(f"s_sub_u32 s34, {4*32*4096*192*2}, s66"); A("s_mov_b32 s35, 0x20000")
    if ROT:
        A(f"s_mul_i32 s67, s2, {ROT}"); A("s_mul_i32 s65, s67, 0xaaab"); A("s_lshr_b32 s65, s65, 20"); A("s_mul_i32 s65, s65, 24"); A("s_sub_u32 s67, s67, s65")
        A("s_lshr_b32 s65, s67, 3"); A("s_lshl_b32 s65, s65, 17"); A("s_cmp_ge_u32 s65, 0x30000"); A("s_cselect_b32 s70, 0x30000, 0"); A("s_sub_u32 s65, s65, s70")
        A("s_and_b32 s70, s67, 7"); A("s_lshl_b32 s70, s70, 12"); A(f"s_add_u32 s{TAB}, s65, s70")
    else:
        A("s_mov_b32 s67, 0"); A(f"s_mov_b32 s{TAB}, 0")
    def tabnext(n):
        if not ROT:
            A(f"s_mov_b32 s{TAB+n}, {[0,2,1][n>>3]*65536 + (n&7)*4096}")
            return
        A(f"s_add_u32 s{TAB+n}, s{TAB+n-1}, 0x1000"); A(f"s_bitcmp1_b32 s{TAB+n}, 15"); A("s_cselect_b32 s65, 0x18000, 0"); A(f"s_add_u32 s{TAB+n}, s{TAB+n}, s65")
        A(f"s_cmp_ge_u32 s{TAB+n}, 0x30000"); A("s_cselect_b32 s65, 0x30000, 0"); A(f"s_sub_u32 s{TAB+n}, s{TAB+n}, s65")
    tabnext(1); tabnext(2)
    A("s_waitcnt lgkmcnt(0)")
    A("s_add_u32 s32, s6, s66"); A("s_addc_u32 s33, s7, 0")
    A("s_add_u32 s68, s8, s66"); A("s_addc_u32 s69, s9, 0")
    A("s_barrier")
    def slot(t, first):
        if first and t < NPRE: return PB + 4*t
        return RB + 4*(t % RING)
    def load(t, first=False):
        r = slot(t, first); tt = t % 48
        A(f"buffer_load_dwordx4 v[{r}:{r+3}], {vB if tt & 1 else vA}, s[32:35], s{TAB + tt//2} offen {pol}")
    for t in range(DD): load(t, True)
    if TS: A("v_writelane_b32 v255, s94, 0")
    C("per-lane constants")
    for n in range(3, 24): tabnext(n)
    A("v_lshrrev_b32 v17, 3, v0")
    A("s_lshl_b32 s65, s64, 5"); A(f"s_add_u32 s65, s65, {SC}")
    A(f"v_lshl_add_u32 {vPR}, v17, 2, s65")
    A(f"v_bfe_u32 {vT}, v0, 2, 1"); A(f"v_lshl_add_u32 {vKW}, {vT}, 10, {vPR}")
    A("s_add_u32 s70, s64, s67"); A("s_lshl_b32 s70, s70, 1")
    A("v_and_b32 v18, 7, v0")
    for s in range(3):
        A(f"s_add_u32 s65, s70, {s}"); A(f"v_add_u32 v19, s65, v17")
        A("v_mul_u32_u24 v20, 0xab, v19"); A("v_lshrrev_b32 v20, 9, v20"); A("v_mul_u32_u24 v20, 3, v20"); A("v_sub_u32 v19, v19, v20")
        A(f"v_lshlrev_b32 v19, 7, v19"); A(f"v_lshl_add_u32 v19, v18, 4, v19"); A(f"v_add_u32 v{vQA[s]}, {QL}, v19")
        A("s_mul_i32 s71, s65, 0xab"); A("s_lshr_b32 s71, s71, 9"); A("s_mul_i32 s71, s71, 3"); A("s_sub_u32 s65, s65, s71")
        A("s_lshl_b32 s65, s65, 8"); A("s_mul_i32 s71, s64, 768"); A("s_add_u32 s65, s65, s71"); A(f"s_add_u32 s65, s65, {ACC}")
        A("v_lshl_add_u32 v19, v18, 3, v17"); A(f"v_lshl_add_u32 v{vZA[s]}, v19, 2, s65")
    C("wo / w_down descriptor")
    A("s_lshr_b32 s71, s31, 1"); A("s_and_b32 s72, s31, 1"); A("s_mul_i32 s72, s72, 640")
    A("s_mul_i32 s73, s30, 192"); A("s_mul_i32 s74, s71, 48"); A("s_add_u32 s73, s73, s74"); A("s_lshl_b32 s74, s64, 4"); A("s_add_u32 s73, s73, s74")
    A("s_lshl_b32 s74, s30, 6"); A("s_lshl_b32 s75, s71, 4"); A("s_add_u32 s74, s74, s75")
    A("s_cmp_lt_u32 s30, 24"); A("s_cselect_b32 s74, s74, 0"); A(f"s_cselect_b32 s75, {16*1280 - 640}, 0")
    A("s_cmp_lt_u32 s64, 3"); A("s_cselect_b32 s73, s73, s74"); A(f"s_cselect_b32 s38, {16*1280 - 640}, s75")
    A("s_cselect_b32 s36, s12, s20"); A("s_cselect_b32 s37, s13, s21")
    A("s_mul_i32 s73, s73, 1280"); A("s_add_u32 s73, s73, s72")
    A("s_add_u32 s36, s36, s73"); A("s_addc_u32 s37, s37, 0"); A("s_mov_b32 s39, 0x20000")
    A("s_lshr_b32 s76, s64, 1"); A("s_lshl_b32 s76, s76, 12"); A("s_and_b32 s77, s64, 1"); A("s_lshl_b32 s77, s77, 10"); A("s_add_u32 s76, s76, s77")
    for t in range(DD, NPRE):
        A(f"s_waitcnt vmcnt({DD-1})"); load(t, True)
    ts(1)
    A("s_barrier")
    ts(2)
    def readq():
        for s in range(3):
            A(f"ds_read_b128 v[{Q+4*s}:{Q+4*s+3}], v{vQA[s]}")
        for s in range(3):
            A(f"v_add_u32 v{vQA[s]}, 384, v{vQA[s]}")
    readq()
    def next_phase_srd(kphase):
        A("s_add_u32 s32, s32, 50331648"); A("s_addc_u32 s33, s33, 0"); A("s_sub_u32 s34, s34, 50331648")
        if kphase:
            A("s_cmp_eq_u32 s78, 3"); A("s_cselect_b32 s32, s68, s32"); A("s_cselect_b32 s33, s69, s33"); A("s_cselect_b32 s34, s79, s34")
    A("s_mov_b32 s78, 0"); A("s_mov_b32 s79, s34")
    def merge1():
        A(f"v_add_f32_dpp {vm}, {va}, {va} row_half_mirror row_mask:0xf bank_mask:0x5")
        A(f"v_add_f32_dpp {vm}, {vb}, {vb} row_half_mirror row_mask:0xf bank_mask:0xa")
    def merge2(): A(f"v_add_f32_dpp {vm}, {vm}, {vm} quad_perm:[1,0,3,2] row_mask:0xf bank_mask:0xf")
    def merge3(): A(f"v_add_f32_dpp {vm}, {vm}, {vm} quad_perm:[2,3,0,1] row_mask:0xf bank_mask:0xf")
    def ldsaddr(n, base):
        if ROT:
            A(f"s_lshr_b32 s65, s{TAB+n}, 5"); A(f"v_add_u32 {vT}, s65, {base}")
            return vT, 0
        return base, ([0,2,1][n>>3]*65536 + (n&7)*4096) >> 5
    def kconsume(t, first):
        r = slot(t, first); acc = vb if t & 1 else va; q = Q + 4*(t % 3)
        pend = (t % 2 == 0 and t > 0)
        if pend:
            ad, of = ldsaddr(t//2 - 1, vKW)
            merge1()
        A(f"v_mov_b32 {acc}, 0")
        A(f"v_dot2c_f32_bf16 {acc}, v{r}, v{q}")
        if pend: merge2()
        A(f"v_dot2c_f32_bf16 {acc}, v{r+1}, v{q+1}")
        A(f"v_dot2c_f32_bf16 {acc}, v{r+2}, v{q+2}")
        if pend: merge3()
        A(f"v_dot2c_f32_bf16 {acc}, v{r+3}, v{q+3}")
        if pend: A(f"ds_write_b32 {ad}, {vm} offset:{of}")
    def kfinish():
        ad, of = ldsaddr(23, vKW)
        readq()
        merge1(); merge2(); merge3()
        A(f"ds_write_b32 {ad}, {vm} offset:{of}")
        A(f"v_add_u32 {vKW}, 6144, {vKW}")
        A("s_add_u32 s78, s78, 1")
        A("s_waitcnt lgkmcnt(0)")
        A("s_barrier")
        ts_dyn("s78", 3)
    issued = NPRE; landed = NPRE - DD
    def issue_one():
        nonlocal issued, landed
        A(f"s_waitcnt vmcnt({DD-1})"); landed = max(landed, issued - DD + 1)
        if issued == 48: next_phase_srd(False)
        load(issued, True if issued < 48 else False); issued += 1
    for _ in range(min(DD, 48 - NPRE)): issue_one()
    A("s_waitcnt lgkmcnt(0)")
    start = issued
    for c in range(48):
        target = max(start + ((c+1)*(48 + DD - start))//48, min(c + 1 + DD, 48 + DD))
        while issued < target and (issued - RING < c or issued - RING < NPRE):
            issue_one()
        if landed < c + 1:
            A(f"s_waitcnt vmcnt({issued - c - 1})"); landed = c + 1
        kconsume(c, True)
    assert issued == 48 + DD
    kfinish()
    LB("L_kloop")
    for t in range(48):
        A(f"s_waitcnt vmcnt({DD-1})")
        if t + DD == 48: next_phase_srd(True)
        load(t + DD)
        kconsume(t, False)
    kfinish()
    A("s_cmp_lt_u32 s78, 4"); A("s_cbranch_scc1 L_kloop")
    def pread(n):
        if ROT:
            ad, of = ldsaddr(n, vPR)
            A(f"ds_read2st64_b32 v[{PP[n&1]}:{PP[n&1]+1}], {ad} offset0:0 offset1:4")
        else:
            _, of = ldsaddr(n, vPR)
            A(f"ds_read2st64_b32 v[{PP[n&1]}:{PP[n&1]+1}], {vT if n & 1 else vPR} offset0:{of >> 8} offset1:{(of >> 8) + 4}")
    def vconsume(t):
        r = slot(t, False); n = t//2; p = f"v{PP[n&1] + (t&1)}"; a = AC + 8*(t % 3)
        if t % 2 == 0:
            A("s_waitcnt lgkmcnt(0)")
            if n < 23: pread(n + 1)
        A(f"v_lshlrev_b32 {vph}, 16, {p}")
        for i in range(4): A(f"v_dot2c_f32_bf16 v{a+2*i}, v{r+i}, {p}")
        for i in range(4): A(f"v_dot2c_f32_bf16 v{a+2*i+1}, v{r+i}, {vph}")
    LB("L_vloop")
    if not ROT: A(f"v_add_u32 {vT}, 128, {vPR}")
    pread(0)
    for r in range(24): A(f"v_mov_b32 v{AC+r}, 0")
    for t in range(48 - DD):
        A(f"s_waitcnt vmcnt({DD-1})"); load(t + DD); vconsume(t)
    A("s_cmp_eq_u32 s78, 7"); A("s_cbranch_scc1 L_vlast")
    for t in range(48 - DD, 48):
        A(f"s_waitcnt vmcnt({DD-1})")
        if t + DD == 48: next_phase_srd(False)
        load(t + DD); vconsume(t)
    LB("L_vred")
    A("s_nop 2")
    ac = lambda s, e: f"v{AC + 8*s + e}"
    for s in range(3):
        for e in range(4): A(f"v_permlane32_swap_b32 {ac(s,e)}, {ac(s,e+4)}")
    for s in range(3):
        for e in range(4): A(f"v_add_f32 {ac(s,e)}, {ac(s,e)}, {ac((s+2)%3,e+4)}")
    for s in range(3):
        for e in range(2): A(f"v_permlane16_swap_b32 {ac(s,e)}, {ac(s,e+2)}")
    for s in range(3):
        for e in range(2): A(f"v_add_f32 {ac(s,e)}, {ac(s,e)}, {ac((s+1)%3,e+2)}")
    for s in range(3):
        A(f"v_add_f32_dpp {ac(s,4)}, {ac((s+2)%3,0)}, {ac(s,0)} row_ror:8 row_mask:0xf bank_mask:0x3")
    for s in range(3):
        A(f"v_add_f32_dpp {ac(s,4)}, {ac(s,1)}, {ac((s+2)%3,1)} row_ror:8 row_mask:0xf bank_mask:0xc")
    for s in range(3): A(f"ds_write_b32 v{vZA[s]}, {ac(s,4)}")
    for s in range(3): A(f"v_add_u32 v{vZA[s]}, 3072, v{vZA[s]}")
    A(f"v_add_u32 {vPR}, 6144, {vPR}")
    A("s_add_u32 s78, s78, 1")
    A("s_waitcnt lgkmcnt(0)")
    A("s_barrier")
    ts_dyn("s78", 3)
    A("s_cmp_lt_u32 s78, 8"); A("s_cbranch_scc1 L_vloop")
    A("s_waitcnt vmcnt(0)")
    ts(12)
    A("s_barrier")
    ts_store()
    A("s_endpgm")
    LB("L_vlast")
    dma = [(Ln, mh) for mh in range(2) for Ln in range(5)]
    nd = 0
    per = -(-10 // DD)
    for t in range(48 - DD, 48):
        A(f"s_waitcnt vmcnt({47 - t + nd})")
        for _ in range(per):
            if nd < 10:
                Ln, mh = dma[nd]
                A(f"s_add_u32 m0, s76, {WST + 8192*Ln + 2048*mh}"); A(f"s_movk_i32 s65, {4*mh*1280 + 128*Ln}")
                A(f"buffer_load_dwordx4 {vWo}, s[36:39], s65 offen {pol} lds"); nd += 1
        vconsume(t)
    assert nd == 10
    A("s_branch L_vred")
    LB("L_end")
    A("s_endpgm")

    body, added = fix_hazards(L)
    out = [HEADER.rstrip("\n"),
           f"; @launch grid=(256,1,1) block=(512,1,1) lds={LDS_BYTES}",
           '.amdgcn_target "amdgcn-amd-amdhsa--gfx950"', ".text", f".globl {NAME}_kernel", ".p2align 8", f".type {NAME}_kernel,@function"]
    out += body
    out += ['.section .rodata,"a"', ".p2align 6", f".amdhsa_kernel {NAME}_kernel",
            "  .amdhsa_next_free_vgpr 256", "  .amdhsa_next_free_sgpr 102", "  .amdhsa_accum_offset 256",
            "  .amdhsa_group_segment_fixed_size 0", "  .amdhsa_kernarg_size 104", "  .amdhsa_user_sgpr_count 2",
            "  .amdhsa_user_sgpr_kernarg_segment_ptr 1", "  .amdhsa_system_sgpr_workgroup_id_x 1",
            "  .amdhsa_float_denorm_mode_32 3", ".end_amdhsa_kernel"]
    return "\n".join(out) + "\n"

if __name__ == "__main__":
    kw = eval("dict(" + (sys.argv[1] if len(sys.argv) > 1 else "") + ")")
    sys.stdout.write(gen(**kw))
```
